```python
import torch

def _softmax(x, axis=-1):
    return torch.softmax(x, dim=axis)
def _gelu(x):
    return torch.nn.functional.gelu(x, approximate="tanh")
def _silu(x):
    return torch.nn.functional.silu(x)
def _sigmoid(x):
    return torch.sigmoid(x)
def _layernorm(x, axis=-1, eps=1e-5):
    m = x.mean(dim=axis, keepdim=True)
    v = x.var(dim=axis, keepdim=True, unbiased=False)
    return (x - m) / torch.sqrt(v + eps)
def _scatter_add(tgt, idx, src, axis=0):
    return tgt.clone().index_add_(axis, idx, src)
def _segment_sum(src, seg, n):
    out = torch.zeros((n,) + src.shape[1:], dtype=src.dtype)
    return out.index_add_(0, seg, src)
def _pad(x, pw):
    flat = tuple(v for pair in reversed(pw) for v in pair)
    return torch.nn.functional.pad(x, flat)

kernel_name = 'concat_heads__ssm_conv_s4d__grouped_kv_mqa__prompt'

def setup_inputs():

    _w = (lambda a: (lambda t: t.to(torch.bfloat16) if t.is_floating_point() else t)(torch.as_tensor(a)))
    def _A_setup():
        Bsz, L, D, N = 1, 2048, 448, 256
        return {
            "u": _w((lambda *s: torch.randn(*s, dtype=torch.bfloat16) * 0.05)(Bsz, L, D)),
            "log_A_real": _w((lambda *s: torch.randn(*s, dtype=torch.bfloat16) * 6.4)(D, N) * 0.5),
            "A_imag": _w((lambda *s: torch.randn(*s, dtype=torch.bfloat16) * 0.05)(D, N) * 3.14),
            "C_real": _w((lambda *s: torch.randn(*s, dtype=torch.bfloat16) * 0.4)(D, N) / N ** 0.5),
            "C_imag": _w((lambda *s: torch.randn(*s, dtype=torch.bfloat16) * 0.4)(D, N) / N ** 0.5),
            "log_dt": _w((lambda *s: torch.randn(*s, dtype=torch.bfloat16) * 0.05)(D) * 0.5 - 4.0),
            "D_skip": _w((lambda *s: torch.randn(*s, dtype=torch.bfloat16) * 0.05)(D)),
        }
    _A_in = _A_setup()

    def _B_setup():
        B, S, D, H = 1, 2048, 448, 16
        Dh = D // H
        return {
            "x": _w((lambda *s: torch.randn(*s, dtype=torch.bfloat16) * 0.05)(B, S, D)),
            "wq": _w((lambda *s: torch.randn(*s, dtype=torch.bfloat16) * 1.6)(D, H * Dh)),
            "wk": _w((lambda *s: torch.randn(*s, dtype=torch.bfloat16) * 1.6)(D, Dh)),
            "wv": _w((lambda *s: torch.randn(*s, dtype=torch.bfloat16) * 0.05)(D, Dh)),
            "wo": _w((lambda *s: torch.randn(*s, dtype=torch.bfloat16) * 0.05)(H * Dh, D)),
        }
    _B_in = _B_setup()

    return {
        "A_u": _A_in["u"],
        "A_log_A_real": _A_in["log_A_real"],
        "A_A_imag": _A_in["A_imag"],
        "A_C_real": _A_in["C_real"],
        "A_C_imag": _A_in["C_imag"],
        "A_log_dt": _A_in["log_dt"],
        "A_D_skip": _A_in["D_skip"],
        "B_x": _B_in["x"],
        "B_wq": _B_in["wq"],
        "B_wk": _B_in["wk"],
        "B_wv": _B_in["wv"],
        "B_wo": _B_in["wo"],
    }

def reference(A_u, A_log_A_real, A_A_imag, A_C_real, A_C_imag, A_log_dt, A_D_skip, B_x, B_wq, B_wk, B_wv, B_wo):
    def _A_ref(u, log_A_real, A_imag, C_real, C_imag, log_dt, D_skip):
        L = u.shape[1]
        dt = torch.exp(log_dt)
        A = -torch.exp(log_A_real) + 1j * A_imag
        C = (C_real + 1j * C_imag) * dt[:, None]
        pos = (lambda x, dt: x.to(dt))(torch.arange(L), log_dt.dtype)
        P = torch.exp((A * dt[:, None])[:, :, None] * pos[None, None, :])
        K = 2.0 * torch.einsum("dn,dnl->dl", C, P).real
        L2 = 2 * L
        u_t = (lambda x, *d: x.permute(*d))(u, 0, 2, 1)
        Kf = (lambda x, *a, **k: torch.fft.rfft(x.float(), *a, **k))(K, L2)
        Uf = (lambda x, *a, **k: torch.fft.rfft(x.float(), *a, **k))(u_t, L2)
        y = (lambda x, *a, **k: torch.fft.irfft(x, *a, **k).to(torch.bfloat16))(Uf * Kf[None, :, :], L2)[:, :, :L]
        y = (lambda x, *d: x.permute(*d))(y, 0, 2, 1)
        return y + u * D_skip[None, None, :]

    def _B_ref(x, wq, wk, wv, wo):
        B, S, D = x.shape
        H = 16
        Dh = D // H
        q = (lambda x, *d: x.permute(*d))((x @ wq).reshape(B, S, H, Dh), 0, 2, 1, 3)
        k = x @ wk
        v = x @ wv
        scores = torch.einsum("bhqd,bkd->bhqk", q, k) * (Dh ** -0.5)
        p = _softmax(scores, axis=-1)
        o = torch.einsum("bhqk,bkd->bhqd", p, v)
        return (lambda x, *d: x.permute(*d))(o, 0, 2, 1, 3).reshape(B, S, H * Dh) @ wo

    a = _A_ref(A_u, A_log_A_real, A_A_imag, A_C_real, A_C_imag, A_log_dt, A_D_skip)
    b = _B_ref(B_x, B_wq, B_wk, B_wv, B_wo)
    return torch.concatenate([a, b], axis=-1)
```

```python
from mblib import *
K=[('tr_kernel','''
  s_load_dwordx4 s[4:7], s[0:1], 0
  v_lshlrev_b32 v1, 2, v0        ; lane*4
  s_mov_b32 s10, 0
1:
  v_add_u32 v2, s10, v1
  v_lshrrev_b32 v3, 1, v2
  v_add_u32 v4, 1, v3
  v_lshl_or_b32 v3, v4, 16, v3
  ds_write_b32 v2, v3
  s_add_u32 s10, s10, 256
  s_cmp_lt_u32 s10, 8192
  s_cbranch_scc1 1b
  s_waitcnt lgkmcnt(0)
  v_and_b32 v5, 15, v0
  v_lshrrev_b32 v6, 2, v5
  v_lshrrev_b32 v7, 5, v0
  v_lshl_add_u32 v6, v7, 3, v6   ; row
  v_lshlrev_b32 v6, 7, v6
  v_and_b32 v8, 3, v0
  v_lshlrev_b32 v8, 3, v8
  v_and_b32 v9, 16, v0
  v_lshlrev_b32 v9, 1, v9
  v_add3_u32 v6, v6, v8, v9
  ds_read_b64_tr_b16 v[10:11], v6
  ds_read_b64_tr_b16 v[12:13], v6 offset:512
  v_mov_b32 v14, -1
  v_mov_b32 v15, -1
  ds_read_u16_d16 v14, v1
  ds_read_u16_d16_hi v15, v1
  s_waitcnt lgkmcnt(0)
  v_lshlrev_b32 v1, 4, v0
  global_store_dwordx4 v1, v[10:13], s[4:5]
  global_store_dwordx2 v1, v[14:15], s[4:5] offset:1024
  s_waitcnt vmcnt(0)
''',32,32)]
co = build(K,'mb6')
if os.path.exists('/dev/kfd'):
    R = Runner(co,[k[0] for k in K])
    R.run('tr_kernel',1,64,lds=8192,reps=1)
    o = R.out.to_numpy(np.uint16,(128,8))
    for l in range(64): print(l, [(int(x)//64,int(x)%64) for x in o[l]])
    print([hex(x) for x in o[64+3][:4]])
```

```python
import re

TRANS = ('v_exp_f32','v_log_f32','v_rcp_f32','v_rsq_f32','v_sqrt_f32','v_sin_f32','v_cos_f32','v_rcp_iflag_f32',
         'v_exp_f16','v_log_f16','v_rcp_f16','v_rsq_f16','v_sqrt_f16','v_sin_f16','v_cos_f16')

def regs_of(op):
    op = op.strip()
    out = set()
    m = re.fullmatch(r'-?(?:abs\()?\|?([vsa])(\d+)\|?\)?', op)
    if m:
        out.add(m.group(1)+m.group(2)); return out
    m = re.fullmatch(r'-?([vsa])\[(\d+):(\d+)\]', op)
    if m:
        for i in range(int(m.group(2)), int(m.group(3))+1): out.add(m.group(1)+str(i))
        return out
    if op in ('vcc','exec'):
        return {op+'_lo', op+'_hi'}
    if op in ('vcc_lo','vcc_hi','exec_lo','exec_hi','m0','scc'):
        return {op}
    return out

class Ins:
    def __init__(self, text):
        self.text = text
        t = text.split(';')[0].split('//')[0].strip()
        self.label = None; self.mn = None; self.ops = []
        self.dst = set(); self.src = set()
        self.isdir = False
        if not t:
            self.isdir = True; return
        if t.endswith(':'):
            self.label = t[:-1]; return
        if t.startswith('.'):
            self.isdir = True; return
        parts = t.split(None, 1)
        self.mn = parts[0]
        rest = parts[1] if len(parts) > 1 else ''
        ops = []; cur = ''; depth = 0
        for ch in rest:
            if ch in '[(': depth += 1
            if ch in '])': depth -= 1
            if ch == ',' and depth == 0:
                ops.append(cur.strip()); cur = ''
            else: cur += ch
        if cur.strip(): ops.append(cur.strip())
        self.mods = ''
        if ops:
            last = ops[-1].split()
            ops[-1] = last[0]; self.mods = ' '.join(last[1:])
        self.ops = ops
        mn = self.mn
        base = re.sub(r'_(e32|e64|dpp|sdwa)$', '', mn)
        self.base = base
        R = [regs_of(o) for o in ops]
        self.valu = base.startswith('v_') and not base.startswith('v_mfma')
        self.mfma = base.startswith('v_mfma')
        self.salu = base.startswith('s_')
        self.ds = base.startswith('ds_')
        self.vmem = base.startswith(('buffer_','global_','flat_'))
        self.trans = base in TRANS
        self.dpp = mn.endswith('_dpp') or 'row_' in self.mods or 'quad_perm' in self.mods or 'wave_' in self.mods
        self.ldsdma = self.vmem and (' lds' in ' '+self.mods or 'load_lds' in base)
        U = lambda L: set().union(*L) if L else set()
        if self.mfma:
            self.dst = R[0]; self.A = R[1]; self.B = R[2]; self.C = R[3]; self.src = R[1]|R[2]|R[3]
            self.passes = 8 if '32x32' in base else 4
        elif self.valu:
            if base.startswith('v_cmp'):
                self.dst = R[0]; self.src = U(R[1:])
                if base.startswith('v_cmpx'): self.dst |= {'exec_lo','exec_hi'}
            elif base.startswith('v_permlane') and 'swap' in base:
                self.dst = R[0]|R[1]; self.src = R[0]|R[1]
            elif base in ('v_add_co_u32','v_sub_co_u32','v_subrev_co_u32','v_addc_co_u32','v_subb_co_u32','v_div_scale_f32','v_mad_u64_u32'):
                self.dst = R[0]|R[1]; self.src = U(R[2:])
            elif base in ('v_fmac_f32','v_writelane_b32','v_pk_fmac_f16','v_dot2c_f32_bf16'):
                self.dst = R[0]; self.src = U(R)
            elif base == 'v_nop':
                pass
            else:
                self.dst = R[0]; self.src = U(R[1:])
                if base == 'v_cndmask_b32' and len(ops) == 3: self.src |= {'vcc_lo','vcc_hi'}
                if self.dpp: self.src |= R[0]
        elif self.ds:
            if base.startswith(('ds_read','ds_bpermute','ds_permute','ds_swizzle')) or '_rtn' in base:
                self.dst = R[0]; self.src = U(R[1:])
            else:
                self.src = U(R)
        elif self.vmem:
            if self.ldsdma:
                self.src = U(R) | {'m0'}
            elif '_load' in base or ('atomic' in base and 'sc0' in self.mods):
                self.dst = R[0]; self.src = U(R[1:])
                if 'atomic' in base and base.startswith('buffer'): self.src |= R[0]
            else:
                self.src = U(R)
            self.widestore = ('store' in base) and base.endswith(('x3','x4'))
            if self.widestore:
                self.sdata = R[0] if base.startswith('buffer') else R[1]
        elif self.salu:
            nod = ('s_cmp','s_waitcnt','s_barrier','s_branch','s_cbranch','s_nop','s_setprio','s_endpgm','s_sleep','s_bitcmp','s_setpc','s_sendmsg')
            if base.startswith(nod):
                self.src = U(R)
            else:
                self.dst = R[0] if R else set(); self.src = U(R[1:])
                if 'saveexec' in base: self.dst |= {'exec_lo','exec_hi'}
        self.isbranch = self.salu and base.startswith(('s_branch','s_cbranch'))
        self.uncond = self.salu and base in ('s_branch','s_endpgm','s_setpc_b64')
    def states(self):
        if self.mn is None: return 0
        if self.base == 's_nop': return int(self.ops[0], 0) + 1
        return 1

def isv(r): return r[0] == 'v' and r[1:].isdigit() or r[0] == 'a' and r[1:].isdigit()
def iss(r): return (r[0] == 's' and r[1:].isdigit()) or r.startswith('vcc')

def need(p, c):
    n = 0
    if p.mn is None or c.mn is None: return 0
    pv = {r for r in p.dst if isv(r)}
    ps = {r for r in p.dst if iss(r)}
    if p.valu:
        if c.mfma and pv & c.src: n = max(n, 2)
        if c.valu and c.base in ('v_readlane_b32','v_readfirstlane_b32') and pv & c.src: n = max(n, 1)
        if c.valu and c.base.startswith('v_permlane') and pv & c.src: n = max(n, 2)
        if c.valu and c.dpp and pv & c.src: n = max(n, 2)
        if p.trans and c.valu and not c.trans and pv & c.src: n = max(n, 1)
        if p.trans and (c.ds or c.vmem) and pv & c.src: n = max(n, 1)
        if c.vmem and ps & c.src: n = max(n, 5)
        if c.valu and ps & c.src:
            n = max(n, 4 if c.base in ('v_readlane_b32','v_writelane_b32') else 2)
        if c.salu and ps & c.src: n = max(n, 1)
        if 'exec_lo' in p.dst:
            if c.mfma: n = max(n, 4)
            if c.valu and (c.dpp): n = max(n, 5)
            if c.valu and c.base.startswith(('v_readlane','v_readfirstlane','v_writelane','v_permlane')): n = max(n, 4)
        if 'op_sel' in p.mods and not p.base.startswith('v_pk') and c.valu and pv & c.src: n = max(n, 1)
    if p.mfma:
        P = p.passes
        if c.mfma:
            if p.dst & (c.A | c.B): n = max(n, {4:8, 8:12}[P])
            if p.dst & c.C and not (p.dst == c.C and p.passes == c.passes): n = max(n, {4:6, 8:10}[P])
            if p.dst & c.dst and not p.dst & c.C: n = max(n, {4:6, 8:10}[P])
        elif c.valu or c.ds or c.vmem:
            if p.dst & (c.src | c.dst): n = max(n, {4:8, 8:12}[P])
        if c.valu and p.C & c.dst: n = max(n, {4:3, 8:7}[P])
    if p.salu and 'm0' in p.dst and c.vmem and c.ldsdma: n = max(n, 1)
    if p.vmem and getattr(p, 'widestore', False):
        if p.sdata & c.dst: n = max(n, 2)
    return n

class Asm:
    def __init__(self):
        self.lines = []
    def __call__(self, s):
        for l in s.split('\n'):
            if l.strip(): self.lines.append(l.strip())
    def label(self, l): self.lines.append(l + ':')
    def pad(self, verbose=False):
        ins = [Ins(l) for l in self.lines]
        total = 0
        while True:
            labels = {x.label: i for i, x in enumerate(ins) if x.label}
            bts = {}
            for i, x in enumerate(ins):
                if x.mn and x.isbranch:
                    tgt = x.ops[0]
                    if tgt in labels: bts.setdefault(labels[tgt], []).append(i)
            changed = False
            for i, c in enumerate(ins):
                if c.mn is None: continue
                deficit = 0
                stack = [(i, 0)]; seen = {}
                while stack:
                    j, d = stack.pop()
                    preds = []
                    if j > 0 and not (ins[j-1].mn and ins[j-1].uncond): preds.append(j-1)
                    if j in bts: preds += [b for b in bts[j]]
                    for k in preds:
                        x = ins[k]
                        if x.mn is not None:
                            nd = need(x, c)
                            if nd > d: deficit = max(deficit, nd - d)
                        d2 = d + x.states()
                        if d2 < 13 and seen.get(k, 99) > d2:
                            seen[k] = d2; stack.append((k, d2))
                if deficit:
                    if verbose: print(f'pad {deficit} before [{i}] {c.text}')
                    ins.insert(i, Ins(f's_nop {deficit-1}'))
                    total += deficit
                    changed = True
                    break
            if not changed: break
        self.lines = [x.text for x in ins]
        return total
    def text(self):
        out = []
        for l in self.lines:
            if l.endswith(':') or l.startswith('.'): out.append(l)
            else: out.append('    ' + l)
        return '\n'.join(out) + '\n'

def vr(b, n=1):
    return f'v{b}' if n == 1 else f'v[{b}:{b+n-1}]'
def sr(b, n=1):
    return f's{b}' if n == 1 else f's[{b}:{b+n-1}]'
```

```python
from asmlib import *
import struct
NAME = 'concat_heads__ssm_conv_s4d__grouped_kv_mqa__prompt'
QF_OFF   = 0x000000; QF_SZ = 0x200000
KVF_OFF  = 0x200000; KVF_SZ = 0x40000
OF_OFF   = 0x280000; OF_SZ = 0x200000
G_OFF    = 0x480000; G_CH = 8448; G_ODD = 4224; G_SZ = 448*G_CH
WOF_OFF  = 0x820000; WOF_SZ = 14*32*1024
UT_OFF   = 0x8A0000; UT_SZ = 448*4096
YT_OFF   = 0xA60000; YT_SZ = 448*4096
def f2u(x): return struct.unpack('<I', struct.pack('<f', x))[0]
LOG2E = 1.4426950408889634
QSCALE = LOG2E * 28**-0.5
INV2PI = 0.15915494309189535

def srd(a, d, base, size, off=None):
    if off:
        a(f's_add_u32 s{d}, s{base}, {hex(off)}')
        a(f's_addc_u32 s{d+1}, s{base+1}, 0')
    else:
        a(f's_mov_b32 s{d}, s{base}')
        a(f's_mov_b32 s{d+1}, s{base+1}')
    a(f's_mov_b32 s{d+2}, {hex(size)}')
    a(f's_mov_b32 s{d+3}, 0x20000')

def mfma(d, A, B, C=None):
    c = f'v[{d}:{d+15}]' if C is None else C
    return f'v_mfma_f32_32x32x16_bf16 v[{d}:{d+15}], v[{A}:{A+3}], v[{B}:{B+3}], {c}'

def set_exec(a, lo, hi):
    a(f's_mov_b32 exec_lo, {hex(lo)}'); a(f's_mov_b32 exec_hi, {hex(hi)}')

STAMP_OFF = 32<<20
class Stamper:
    def __init__(self, on, kidx, wsreg):
        self.on = on; self.k = kidx; self.ws = wsreg
    def real(self, a, i):
        if self.on: a(f's_memrealtime s[{64+2*i}:{65+2*i}]')
    def cyc(self, a, i):
        if self.on: a(f's_memtime s[{64+2*i}:{65+2*i}]')
    def init(self, a):
        if self.on:
            for i in range(64, 96): a(f's_mov_b32 s{i}, 0')
    def flush(self, a, vtmp=0):
        if not self.on: return
        if self.on == 3: a('s_waitcnt lgkmcnt(0)'); a('s_getreg_b32 s90, hwreg(HW_REG_HW_ID)')
        if self.on == 2:
            a('s_memtime s[90:91]')
            a('s_waitcnt vmcnt(0)')
        a('s_memrealtime s[94:95]')
        a('s_memtime s[92:93]')
        a('s_mov_b64 exec, -1')
        a('s_lshl_b32 s96, s2, 4')
        a('s_add_u32 s96, s96, s3')
        a('s_lshl_b32 s96, s96, 7')
        a(f's_add_u32 s96, s96, {hex(STAMP_OFF + (self.k<<20))}')
        a(f'v_mbcnt_lo_u32_b32 v{vtmp+1}, -1, 0')
        a(f'v_lshl_add_u32 v{vtmp+1}, v{vtmp+1}, 2, s96')
        a('s_waitcnt lgkmcnt(0)')
        for i in range(16):
            a(f'v_writelane_b32 v{vtmp}, s{64+2*i}, {i}')
        a('s_mov_b64 exec, 0xffff')
        a(f'global_store_dword v{vtmp+1}, v{vtmp}, s[{self.ws}:{self.ws+1}]')
```

```python
from common import *

UTL = 69632
L1_LDS = UTL + 9216
NKG = 224
def gen_l1(cfg={}):
    global ST, POL
    ST = Stamper(cfg.get('stamp'), 0, 44)
    POL = cfg.get('pol1', '')
    a = Asm()
    ST.init(a); ST.real(a,0); ST.cyc(a,1)
    a('s_load_dwordx16 s[16:31], s[0:1], 0')
    a('s_load_dwordx8 s[32:39], s[0:1], 64')
    a('s_load_dwordx2 s[44:45], s[0:1], 112')
    a('v_lshrrev_b32 v1, 6, v0')
    a('v_and_b32 v2, 63, v0')
    a('v_readfirstlane_b32 s3, v1')
    a(f's_cmp_lt_u32 s2, {NKG}')
    a('s_cbranch_scc1 L1_kgen')
    a(f's_cmp_ge_u32 s2, {NKG+256}')
    a('s_cbranch_scc1 L1_woprep')
    proj(a, cfg)
    kgen(a)
    woprep(a)
    a.label('L1_end')
    a('s_endpgm')
    return a

SLOT = 21504; WOFFS = 9216; KVO = 17408
def proj(a, cfg):
    ACC = 8; FR = 24; STG = 44
    a(f's_sub_u32 s40, s2, {NKG}')
    a('s_and_b32 s4, s40, 7')
    a('s_lshr_b32 s41, s40, 6')
    a('s_lshl_b32 s5, s41, 3')
    a('s_or_b32 s4, s4, s5')
    a('s_bfe_u32 s5, s40, 0x30003')
    a('s_lshl_b32 s41, s41, 1')
    a('s_add_u32 s41, s41, s5')
    a('s_cmp_ge_u32 s41, 7')
    a('s_cselect_b32 s42, 7, 0')
    a('s_sub_u32 s41, s41, s42')
    a('s_cmp_ge_u32 s41, 7')
    a('s_cselect_b32 s42, 7, 0')
    a('s_sub_u32 s41, s41, s42')
    if not cfg.get('rot', 1): a('s_mov_b32 s41, 0')
    a('v_lshrrev_b32 v3, 3, v0')
    a('v_and_b32 v4, 7, v0')
    a('v_mul_u32_u24 v5, 896, v3')
    a('v_lshl_add_u32 v5, v4, 4, v5')
    a('v_mov_b32 v7, 0x40000000')
    a('v_cmp_eq_u32 vcc, 7, v4')
    a('v_cndmask_b32 v6, v5, v7, vcc')
    a('v_lshlrev_b32 v1, 4, v0')
    a('s_cmp_lt_u32 s5, 4')
    a('s_cselect_b32 s43, 224, 0')
    a('v_cmp_gt_u32 vcc, s43, v0')
    a('v_cndmask_b32 v7, v7, v1, vcc')
    a('s_mul_i32 s6, s4, 57344')
    a('s_mul_i32 s7, s5, 112')
    a('s_waitcnt lgkmcnt(0)')
    srd(a, 48, 30, 2048*896)
    srd(a, 52, 32, 448*896)
    a('s_bitcmp1_b32 s5, 1')
    a('s_cselect_b32 s56, s36, s34')
    a('s_cselect_b32 s57, s37, s35')
    a('s_mov_b32 s58, 25088')
    a('s_mov_b32 s59, 0x20000')
    for ch in range(7):
        a('s_lshl_b32 s8, s41, 7')
        a('s_add_u32 s8, s8, s6')
        a('s_mul_i32 s9, s41, 57344')
        a('s_add_u32 s9, s9, s7')
        a('s_mul_i32 s10, s41, 3584')
        a(f'buffer_load_dwordx4 {vr(STG+12*ch,4)}, v5, s[48:51], s8 offen')
        a(f'buffer_load_dwordx4 {vr(STG+12*ch+4,4)}, v6, s[52:55], s9 offen')
        a(f'buffer_load_dwordx4 {vr(STG+12*ch+8,4)}, v7, s[56:59], s10 offen')
        if ch < 6:
            a('s_add_u32 s41, s41, 1')
            a('s_cmp_eq_u32 s41, 7')
            a('s_cselect_b32 s41, 0, s41')
    a('v_mul_u32_u24 v5, 144, v3')
    a('v_lshl_add_u32 v5, v4, 4, v5')
    a('v_lshlrev_b32 v6, 1, v3')
    a('v_and_b32 v6, 4, v6')
    a('v_xor_b32 v6, v6, v4')
    a('v_lshlrev_b32 v6, 4, v6')
    a('v_lshl_add_u32 v6, v3, 7, v6')
    a('v_and_b32 v3, 31, v2')
    a('v_lshrrev_b32 v7, 5, v2')
    a('v_mul_u32_u24 v3, 144, v3')
    a('v_lshl_add_u32 v3, v7, 4, v3')
    a('v_bfe_u32 v0, v2, 2, 2')
    a('v_lshl_add_u32 v0, v7, 3, v0')
    a('v_and_b32 v4, 3, v2')
    a('v_lshlrev_b32 v4, 3, v4')
    a('v_and_b32 v7, 16, v2')
    a('v_lshl_add_u32 v4, v7, 1, v4')
    a('s_cmp_eq_u32 s3, 4')
    a('s_cselect_b32 s9, s5, s3')
    a('s_and_b32 s9, s9, 1')
    a('s_mul_i32 s10, s9, 4608')
    a('v_add_u32 v3, s10, v3')
    srd(a, 60, 44, QF_SZ + KVF_SZ)
    a('s_lshl_b32 s11, s4, 1')
    a('s_add_u32 s11, s11, s9')
    a('s_cmp_lt_u32 s3, 4')
    a('s_cselect_b32 s46, s43, 0')
    a('s_cmp_eq_u32 s3, 4')
    a('s_cbranch_scc1 P_kvwave')
    a('s_bfe_u32 s12, s3, 0x10001')
    a('s_mul_i32 s13, s12, 56')
    a('v_add_u32 v4, s13, v4')
    a('v_and_b32 v7, 8, v2')
    a('v_lshlrev_b32 v7, 3, v7')
    a('v_xor_b32 v4, v4, v7')
    a('v_lshl_add_u32 v4, v0, 7, v4')
    def stage(ch, tag):
        slot = (ch & 1) * SLOT
        a(f's_waitcnt vmcnt({3*(6-ch)})')
        a(f'ds_write_b128 v5, {vr(STG+12*ch,4)} offset:{slot}')
        a(f'ds_write_b128 v6, {vr(STG+12*ch+4,4)} offset:{slot+WOFFS}')
        if tag == 'q':
            a('s_cmp_eq_u32 s46, 0')
            a(f's_cbranch_scc1 P_nokvw{ch}')
            a(f'ds_write_b128 v1, {vr(STG+12*ch+8,4)} offset:{slot+KVO}')
            a.label(f'P_nokvw{ch}')
        a('s_waitcnt lgkmcnt(0)')
        a('s_barrier')
        ST.cyc(a, 3+ch)
    def frags(ch):
        st = STG + 12*ch
        fx = [FR, FR+4, FR+8, st]
        fw = [FR+12, FR+16, st+4, st+8]
        return fx, fw
    ST.cyc(a, 2)
    for ch in range(7):
        slot = (ch & 1) * SLOT
        stage(ch, 'q')
        a('s_cmp_ge_u32 s3, 4')
        a(f's_cbranch_scc1 P_skip{ch}')
        fx, fw = frags(ch)
        for t in range(4):
            a(f'ds_read_b128 {vr(fx[t],4)}, v3 offset:{slot+32*t}')
            for u in range(2):
                a(f'ds_read_b64_tr_b16 {vr(fw[t]+2*u,2)}, v4 offset:{slot+WOFFS+(16*t+4*u)*128}')
        for t in range(4):
            a(f's_waitcnt lgkmcnt({3*(3-t)})')
            a(mfma(ACC, fw[t], fx[t], '0' if (ch == 0 and t == 0) else None))
        a.label(f'P_skip{ch}')
    a('s_cmp_ge_u32 s3, 4')
    a('s_cbranch_scc1 L1_end')
    a(f's_mov_b32 s14, {hex(f2u(QSCALE))}')
    a('s_lshl_b32 s15, s11, 4')
    a('s_lshl_b32 s13, s5, 1')
    a('s_add_u32 s15, s15, s13')
    a('s_add_u32 s15, s15, s12')
    a('s_lshl_b32 s15, s15, 11')
    a('v_lshlrev_b32 v3, 4, v2')
    for r in range(16): a(f'v_mul_f32 v{ACC+r}, s14, v{ACC+r}')
    for i in range(8): a(f'v_cvt_pk_bf16_f32 v{32+i}, v{ACC+2*i}, v{ACC+2*i+1}')
    set_exec(a, 0, 0xffffffff)
    a('v_mov_b32 v38, 0'); a('v_mov_b32 v39, 0')
    set_exec(a, 0xffffffff, 0xffffffff)
    a(f'buffer_store_dwordx4 v[32:35], v3, s[60:63], s15 offen {POL}')
    a(f'buffer_store_dwordx4 v[36:39], v3, s[60:63], s15 offen offset:1024 {POL}')
    ST.flush(a); a('s_endpgm')
    a.label('P_kvwave')
    a('v_mul_u32_u24 v0, 56, v0')
    a('v_add_u32 v4, v0, v4')
    for ch in range(7):
        slot = (ch & 1) * SLOT
        stage(ch, 'k')
        a('s_cmp_ge_u32 s5, 4')
        a(f's_cbranch_scc1 P_kskip{ch}')
        fx, fw = frags(ch)
        for t in range(4):
            a(f'ds_read_b128 {vr(fx[t],4)}, v3 offset:{slot+32*t}')
            for u in range(2):
                a(f'ds_read_b64_tr_b16 {vr(fw[t]+2*u,2)}, v4 offset:{slot+KVO+(16*t+4*u)*56}')
        a('s_waitcnt lgkmcnt(0)')
        a('s_cmp_ge_u32 s5, 2')
        a(f's_cbranch_scc1 P_kv{ch}')
        for t in range(4): a(mfma(ACC, fw[t], fx[t], '0' if (ch == 0 and t == 0) else None))
        a(f's_branch P_kskip{ch}')
        a.label(f'P_kv{ch}')
        for t in range(4): a(mfma(ACC, fx[t], fw[t], '0' if (ch == 0 and t == 0) else None))
        a.label(f'P_kskip{ch}')
    a('s_cmp_ge_u32 s5, 4')
    a('s_cbranch_scc1 L1_end')
    a('s_lshl_b32 s15, s11, 12')
    a('s_lshr_b32 s13, s5, 1')
    a('s_lshl_b32 s13, s13, 11')
    a('s_add_u32 s15, s15, s13')
    a(f's_add_u32 s15, s15, {hex(KVF_OFF)}')
    a('v_lshlrev_b32 v3, 4, v2')
    for i in range(8): a(f'v_cvt_pk_bf16_f32 v{32+i}, v{ACC+2*i}, v{ACC+2*i+1}')
    a('s_cmp_ge_u32 s5, 2')
    a('s_cbranch_scc1 P_vfix')
    set_exec(a, 0, 0xffffffff)
    a('v_mov_b32 v38, 0x3f803f80'); a('v_mov_b32 v39, 0x3f80')
    a('s_branch P_kvst')
    a.label('P_vfix')
    set_exec(a, 0x10000000, 0x10000000)
    for i in range(8): a(f'v_mov_b32 v{32+i}, 0x3f803f80')
    set_exec(a, 0xe0000000, 0xe0000000)
    for i in range(8): a(f'v_mov_b32 v{32+i}, 0')
    a.label('P_kvst')
    set_exec(a, 0xffffffff, 0xffffffff)
    a(f'buffer_store_dwordx4 v[32:35], v3, s[60:63], s15 offen {POL}')
    a(f'buffer_store_dwordx4 v[36:39], v3, s[60:63], s15 offen offset:1024 {POL}')
    ST.flush(a); a('s_endpgm')

REG = 8704; PITCH = 272

def kgen(a):
    a.label('L1_kgen')
    a('s_lshr_b32 s5, s3, 2')
    a('s_and_b32 s6, s3, 3')
    a('s_lshl_b32 s7, s2, 1')
    a('s_add_u32 s7, s7, s5')
    a('s_lshl_b32 s8, s7, 9')
    a('s_lshl_b32 s9, s6, 7')
    a('s_add_u32 s8, s8, s9')
    a('v_lshl_add_u32 v3, v2, 1, s8')
    a('s_lshl_b32 s10, s2, 2')
    a('s_mul_i32 s40, s2, 9363')
    a('s_lshr_b32 s40, s40, 16')
    a('s_mul_i32 s41, s40, 7')
    a('s_sub_u32 s41, s2, s41')
    a('s_mul_i32 s42, s40, 57344')
    a('s_lshl_b32 s43, s41, 7')
    a('s_add_u32 s42, s42, s43')
    a('v_lshrrev_b32 v8, 3, v0')
    a('v_and_b32 v9, 7, v0')
    a('v_mul_u32_u24 v10, 896, v8')
    a('v_lshl_add_u32 v10, v9, 4, v10')
    a('v_add_u32 v10, s42, v10')
    a('s_waitcnt lgkmcnt(0)')
    a('global_load_ushort v4, v3, s[18:19]')
    a('global_load_ushort v5, v3, s[20:21]')
    a('global_load_ushort v6, v3, s[22:23]')
    a('global_load_ushort v7, v3, s[24:25]')
    a('s_load_dword s11, s[26:27], s10')
    a('s_load_dword s12, s[28:29], s10')
    UT = 120
    a(f'global_load_dwordx4 {vr(UT,4)}, v10, s[16:17]')
    a('v_mul_u32_u24 v119, 144, v8')
    a('v_lshl_add_u32 v119, v9, 4, v119')
    a('v_lshrrev_b32 v8, 4, v2')
    a('v_bfe_u32 v9, v2, 2, 2')
    a('v_lshl_add_u32 v9, v8, 3, v9')
    a('v_mul_u32_u24 v124, 144, v9')
    a('v_and_b32 v9, 3, v2')
    a('v_lshl_add_u32 v124, v9, 3, v124')
    a('s_mul_i32 s47, s5, 4608')
    a('s_lshl_b32 s48, s6, 5')
    a('s_add_u32 s47, s47, s48')
    a('v_add_u32 v124, s47, v124')
    a('v_and_b32 v9, 15, v2')
    a('v_lshlrev_b32 v125, 12, v9')
    a('v_lshl_add_u32 v125, v8, 4, v125')
    a('s_lshl_b32 s47, s41, 18')
    a('s_lshl_b32 s48, s6, 16')
    a('s_add_u32 s47, s47, s48')
    a('s_lshl_b32 s48, s40, 7')
    a('s_add_u32 s47, s47, s48')
    a('s_lshl_b32 s48, s5, 6')
    a('s_add_u32 s51, s47, s48')
    a('s_lshl_b32 s13, s6, 6')
    a('v_add_u32 v8, s13, v2')
    a(f's_mul_i32 s14, s5, {4*REG}')
    a('s_add_u32 s15, s14, 4096')
    a(f's_mul_i32 s46, s3, {REG}')
    a('v_lshlrev_b32 v9, 4, v8')
    a('v_sub_u32 v9, 4094, v9')
    for jj in range(9):
        a(f'v_subrev_u32 v10, {2*jj}, v9')
        a(f'v_cvt_f32_i32 v{100+jj}, v10')
    for jj in range(0, 9, 2):
        j2 = min(jj+1, 8)
        a(f'v_cvt_pk_bf16_f32 v10, v{100+jj}, v{100+j2}')
        a(f'v_lshlrev_b32 v{100+jj}, 16, v10')
        if j2 != jj: a(f'v_and_b32 v{100+j2}, 0xffff0000, v10')
    for jj in range(9):
        a(f'v_cvt_u32_f32 v{100+jj}, v{100+jj}')
    a('v_mov_b32 v10, 4604')
    a('v_cmp_eq_u32 vcc, 255, v8')
    a('v_cndmask_b32 v108, v108, v10, vcc')
    for jj in range(9):
        a(f'v_add_u32 v{100+jj}, s15, v{100+jj}')
    a('v_lshrrev_b32 v9, 5, v8')
    a('v_and_b32 v10, 31, v8')
    a('v_lshlrev_b32 v10, 3, v10')
    a('v_add_u32 v110, v9, v10')
    a('v_lshlrev_b32 v11, 1, v9')
    a('v_add_u32 v11, 256, v11')
    a('v_lshrrev_b32 v12, 1, v9')
    a('v_lshlrev_b32 v12, 8, v12')
    a('v_and_b32 v13, 1, v9')
    a('v_lshl_add_u32 v12, v13, 2, v12')
    a('v_cmp_gt_u32 vcc, 4, v9')
    a('v_cndmask_b32 v111, v12, v11, vcc')
    a('v_add_u32 v111, v111, v10')
    a('v_lshlrev_b32 v112, 8, v9')
    a('v_add_u32 v112, 1024, v112')
    a('v_add_u32 v112, v112, v10')
    a('v_min_u32 v112, 2300, v112')
    for j in range(3):
        a(f'v_lshl_add_u32 v{110+j}, v{110+j}, 1, s15')
    a('v_lshl_add_u32 v113, v8, 2, s14')
    a('v_mov_b32 v114, s15')
    a('v_lshl_add_u32 v115, v2, 2, s46')
    a('v_and_b32 v9, 31, v2')
    a('v_lshrrev_b32 v10, 5, v2')
    a(f'v_mul_u32_u24 v116, {PITCH}, v9')
    a('v_lshl_add_u32 v116, v10, 4, v116')
    a('v_add_u32 v116, s46, v116')
    a('v_lshlrev_b32 v117, 2, v9')
    a('v_lshl_add_u32 v117, v10, 9, v117')
    a('v_add_u32 v117, s46, v117')
    a(f'v_add_u32 v126, {16*PITCH}, v115')
    a('s_waitcnt lgkmcnt(0)')
    a('s_lshl_b32 s47, s5, 4')
    a('s_lshr_b32 s11, s11, s47')
    a('s_lshl_b32 s11, s11, 16')
    a('s_lshr_b32 s12, s12, s47')
    a('s_lshl_b32 s12, s12, 16')
    a(f's_mov_b32 s48, {hex(f2u(LOG2E))}')
    a('v_mov_b32 v9, s11')
    a('v_mul_f32 v9, s48, v9')
    a('v_exp_f32 v9, v9')
    a('v_mov_b32 v118, s12')
    a('v_cmp_eq_u32 vcc, 0, v8')
    a('v_cvt_pk_bf16_f32 v9, v9, v9')
    a('v_cndmask_b32 v118, 0, v118, vcc')
    a('v_lshlrev_b32 v9, 16, v9')
    ST.cyc(a,2)
    a('s_waitcnt vmcnt(1)')
    ST.cyc(a,3)
    for r in (4,5,6,7): a(f'v_lshlrev_b32 v{r}, 16, v{r}')
    a('v_mul_f32 v4, s48, v4')
    a('v_exp_f32 v4, v4')
    a('v_mul_f32 v5, v5, v9')
    a('v_cvt_pk_bf16_f32 v4, v4, v4')
    a('v_mul_f32 v5, 0.15915494, v5')
    a('v_lshlrev_b32 v4, 16, v4')
    a('v_mul_f32 v6, v6, v9')
    a('v_mul_f32 v4, v4, v9')
    a('v_mul_f32 v7, v7, v9')
    a('v_mul_f32 v4, s48, v4')
    a('v_add_f32 v20, v6, v6')
    a('v_mul_f32 v21, -2.0, v7')
    anchors = [(1.0, 10), (8.0, 12), (128.0, 14), (256.0, 16)]
    for i, (p, d) in enumerate(anchors):
        a(f'v_mul_f32 v{25+3*i}, {hex(f2u(p))}, v5')
        a(f'v_mul_f32 v{24+3*i}, {hex(f2u(-p))}, v4')
    for i, (p, d) in enumerate(anchors):
        a(f'v_fract_f32 v{25+3*i}, v{25+3*i}')
    for i, (p, d) in enumerate(anchors):
        a(f'v_exp_f32 v{24+3*i}, v{24+3*i}')
        a(f'v_cos_f32 v{d}, v{25+3*i}')
        a(f'v_sin_f32 v{d+1}, v{25+3*i}')
    for i, (p, d) in enumerate(anchors):
        a(f'v_mul_f32 v{d}, v{d}, v{24+3*i}')
        a(f'v_mul_f32 v{d+1}, v{d+1}, v{24+3*i}')
    W1, W8, W128, W256, F0, W2, W4 = 10, 12, 14, 16, 20, 18, 94
    PK, CP = 40, 72
    a(f'v_mov_b32 v{PK}, 0x3f80')
    a(f'v_cvt_pk_bf16_f32 v{PK+1}, v{W8}, v{W8+1}')
    a(f'v_cvt_pk_bf16_f32 v{PK+16}, v{W128}, v{W128+1}')
    a(f'v_cvt_pk_bf16_f32 v{CP}, v{F0}, v{F0+1}')
    a(f'v_mov_b32 v{CP+21}, 0')
    L = []; src = W8
    for b in range(2, 16): d = 24 if src != 24 else 26; L.append((d, src, W8, False, PK+b)); src = d
    H = []; src = W128
    for b in range(17, 32): d = 28 if src != 28 else 30; H.append((d, src, W8, False, PK+b)); src = d
    F = []; src = F0
    for c in range(1, 8): d = 32 if src != 32 else 34; F.append((d, src, W1, True, CP+c)); src = d
    Hc = []; src = F0
    for k in range(1, 9):
        d = {1: 96, 2: 98, 3: 38}.get(k, 22 if src != 22 else 6)
        Hc.append((d, src, W256, True, CP+{1: 8, 2: 12, 3: 14}.get(k, 12+k))); src = d
    C3 = F + [(32, 96, W2, True, CP+9), (34, 32, W2, True, CP+10), (32, 34, W2, True, CP+11)]
    C4 = [(W2, W1, W1, False, None), (W4, W2, W2, False, None)] + Hc + [(22, 98, W4, True, CP+13), (6, 38, W4, True, CP+15)]
    T = [4, 8, 36, 122]
    T[3] = 0
    done = {PK, PK+1, PK+16}
    written = set()
    def flush_rows():
        for r in range(0, 32, 2):
            if r not in written and PK+r in done and PK+r+1 in done:
                base = 'v115' if r < 16 else 'v126'
                o = (r % 16) * PITCH
                a(f'ds_write_b32 {base}, v{PK+r} offset:{o}')
                a(f'ds_write_b32 {base}, v{PK+r+1} offset:{o+PITCH}')
                written.add(r)
    chains = [H, L, C4, C3]
    for rnd in range(15):
        cur = [(i, c[rnd]) for i, c in enumerate(chains) if rnd < len(c)]
        for i, (d, g, w, cj, pk) in cur:
            a(f'v_pk_mul_f32 v[{T[i]}:{T[i]+1}], v[{g}:{g+1}], v[{w}:{w+1}] op_sel_hi:[1,0]')
        for i, (d, g, w, cj, pk) in cur:
            neg = 'neg_hi:[1,0,0]' if cj else 'neg_lo:[1,0,0]'
            a(f'v_pk_fma_f32 v[{d}:{d+1}], v[{g}:{g+1}], v[{w}:{w+1}], v[{T[i]}:{T[i]+1}] op_sel:[1,1,0] op_sel_hi:[0,1,1] {neg}')
        flush_rows()
        for i, (d, g, w, cj, pk) in cur:
            if pk is not None:
                a(f'v_cvt_pk_bf16_f32 v{pk}, v{d}, v{d+1}'); done.add(pk)
    flush_rows()
    assert len(written) == 16
    ST.cyc(a,4)
    for t in range(8): a(f'ds_read_b128 {vr(40+4*t,4)}, v116 offset:{32*t}')
    for r in range(21):
        base = 'v115' if r < 16 else 'v126'
        a(f'ds_write_b32 {base}, v{CP+r} offset:{(r%16)*PITCH}')
    AF = [72, 76, 80, 84, 88, 92, 96, 8]
    for t in range(8): a(f'ds_read_b128 {vr(AF[t],4)}, v116 offset:{32*t}')
    a('s_waitcnt vmcnt(0)')
    a(f'ds_write_b128 v119, {vr(UT,4)} offset:{UTL}') if UTL < 65536 else None
    if UTL >= 65536:
        a(f'v_add_u32 v119, {UTL}, v119')
        a(f'v_add_u32 v124, {UTL}, v124')
        a(f'ds_write_b128 v119, {vr(UT,4)}')
    for t in range(8):
        a(f's_waitcnt lgkmcnt({8-t})')
        a(mfma(24, AF[t], 40+4*t, '0' if t == 0 else None))
    a('v_mov_b32 v12, 0')
    srd(a, 52, 44, G_SZ, G_OFF)
    srd(a, 56, 44, UT_SZ, UT_OFF)
    a(f's_mul_i32 s49, s7, {G_CH}')
    for r in range(12):
        a(f'ds_write_b32 v117, v{24+r} offset:{128*((r&3)+8*(r>>2))}')
    a('s_waitcnt lgkmcnt(0)')
    ST.cyc(a,5)
    a('s_barrier')
    ST.cyc(a,6)
    for j in range(3):
        for ww in range(4):
            a(f'ds_read_b32 v{40+4*j+ww}, v113 offset:{ww*REG+1024*j}')
    a('ds_write_b16 v114, v12 offset:4604')
    a('ds_read_b64_tr_b16 v[56:57], v124')
    a(f'ds_read_b64_tr_b16 v[58:59], v124 offset:{4*144}')
    a('s_waitcnt lgkmcnt(3)')
    for j in range(3):
        a(f'v_add_f32 v{40+4*j}, v{40+4*j}, v{41+4*j}')
        a(f'v_add_f32 v{42+4*j}, v{42+4*j}, v{43+4*j}')
    a('v_add_f32 v40, v40, v118')
    for j in range(3):
        a(f'v_add_f32 v{40+4*j}, v{40+4*j}, v{42+4*j}')
    a('v_cvt_pk_bf16_f32 v52, v40, v44')
    a('v_cvt_pk_bf16_f32 v53, v48, v48')
    a('ds_write_b16 v110, v52')
    a('ds_write_b16_d16_hi v111, v52')
    a('ds_write_b16 v112, v53')
    a('s_waitcnt lgkmcnt(3)')
    a(f'buffer_store_dwordx4 v[56:59], v125, s[56:59], s51 offen {POL}')
    a('s_waitcnt lgkmcnt(0)')
    a('s_barrier')
    ST.cyc(a,7)
    for jj in range(9): a(f'ds_read_u16 v{60+jj}, v{100+jj}')
    a('v_lshlrev_b32 v3, 4, v2')
    a('s_lshl_b32 s13, s6, 10')
    a('s_add_u32 s50, s49, s13')
    for r in range(4): a(f'v_mov_b32 v{84+r}, 0')
    a('s_waitcnt lgkmcnt(0)')
    for i in range(4):
        a(f'v_lshl_or_b32 v{72+i}, v{61+2*i}, 16, v{60+2*i}')
        a(f'v_lshl_or_b32 v{76+i}, v{62+2*i}, 16, v{61+2*i}')
    a(f'buffer_store_dwordx4 v[72:75], v3, s[52:55], s50 offen {POL}')
    a(f's_add_u32 s50, s50, {G_ODD}')
    a(f'buffer_store_dwordx4 v[76:79], v3, s[52:55], s50 offen {POL}')
    a('s_cmp_lg_u32 s6, 0')
    a('s_cbranch_scc1 K_done')
    set_exec(a, 1, 0)
    a('s_add_u32 s49, s49, 4096')
    a(f'buffer_store_dwordx4 v[84:87], v3, s[52:55], s49 offen {POL}')
    a(f's_add_u32 s49, s49, {G_ODD}')
    a(f'buffer_store_dwordx4 v[84:87], v3, s[52:55], s49 offen {POL}')
    a.label('K_done')
    ST.flush(a); a('s_endpgm')

def woprep(a):
    a.label('L1_woprep')
    a(f's_sub_u32 s4, s2, {NKG+256}')
    a('s_cmp_ge_u32 s4, 16')
    a('s_cbranch_scc1 L1_end')
    a('s_mul_i32 s5, s4, 25088')
    a('v_lshlrev_b32 v3, 4, v0')
    a('s_waitcnt lgkmcnt(0)')
    a('s_add_u32 s48, s38, s5')
    a('s_addc_u32 s49, s39, 0')
    a('s_mov_b32 s50, 25088')
    a('s_mov_b32 s51, 0x20000')
    for j in range(4):
        a(f's_mov_b32 s8, {8192*j}')
        a(f'buffer_load_dwordx4 {vr(16+4*j,4)}, v3, s[48:51], s8 offen')
    srd(a, 52, 44, WOF_SZ, WOF_OFF)
    a('v_lshrrev_b32 v4, 5, v2')
    a('v_and_b32 v5, 15, v2')
    a('v_lshrrev_b32 v5, 2, v5')
    a('v_lshl_add_u32 v5, v4, 2, v5')
    a('v_mul_u32_u24 v5, 896, v5')
    a('v_and_b32 v6, 3, v2')
    a('v_lshl_add_u32 v5, v6, 3, v5')
    a('v_and_b32 v6, 16, v2')
    a('v_lshl_add_u32 v5, v6, 1, v5')
    a('s_lshl_b32 s9, s3, 6')
    a('v_add_u32 v5, s9, v5')
    a('v_lshlrev_b32 v7, 4, v2')
    a('s_waitcnt vmcnt(0)')
    for j in range(4): a(f'ds_write_b128 v3, {vr(16+4*j,4)} offset:{8192*j}')
    a('s_waitcnt lgkmcnt(0)')
    a('s_barrier')
    a('s_lshl_b32 s10, s3, 15')
    a('s_lshl_b32 s11, s4, 11')
    a('s_add_u32 s10, s10, s11')
    for rep in range(2):
        if rep == 1:
            a('s_cmp_ge_u32 s3, 6')
            a('s_cbranch_scc1 L1_end')
            a(f's_add_u32 s10, s10, {8*32768}')
        for s in range(2):
            for u in range(2):
                a(f'ds_read_b64_tr_b16 {vr(32+8*rep+4*s+2*u,2)}, v5 offset:{(16*s+8*u)*896+512*rep}')
        a('s_waitcnt lgkmcnt(0)')
        for s in range(2):
            a(f'buffer_store_dwordx4 {vr(32+8*rep+4*s,4)}, v7, s[52:55], s10 offen offset:{1024*s} {POL}')
    ST.flush(a); a('s_endpgm')
```

```python
from common import *

RING = 32768
SCR = 65536
CONV = 102400
CCH = 24320
RCOPY = 4160
UZ = 16640
UD = 19200
L2_LDS = CONV + 2*CCH
CONV_SPLIT = [6, 6, 6, 5, 5, 4]

def gen_l2(cfg):
    global ST
    ST = Stamper(cfg.get('stamp'), 1, 20)
    a = Asm()
    ST.init(a); ST.real(a,0); ST.cyc(a,1)
    a('s_cmp_ge_u32 s2, 256')
    a('s_cbranch_scc1 L2_end')
    a('s_load_dwordx2 s[16:17], s[0:1], 0')
    a('s_load_dwordx2 s[18:19], s[0:1], 96')
    a('s_load_dwordx2 s[20:21], s[0:1], 112')
    a('v_lshrrev_b32 v1, 6, v0')
    a('v_and_b32 v2, 63, v0')
    a('v_readfirstlane_b32 s3, v1')
    a('v_lshlrev_b32 v3, 4, v2')
    a('s_cmp_ge_u32 s3, 8')
    a('s_cbranch_scc1 L2_conv')
    attn(a, cfg)
    conv(a, cfg)
    ST.flush(a)
    a.label('L2_end')
    a('s_endpgm')
    return a

Q0, Q1 = 8, 12
O = 16
S = [32, 48]
P = 64
KB = [72, 80]
VB = [88, 96]
VCUR, VNEXT = 4, 5

def attn(a, cfg):
    a('s_and_b32 s4, s2, 7')
    a('s_lshr_b32 s5, s2, 5')
    a('s_lshl_b32 s5, s5, 3')
    a('s_or_b32 s4, s4, s5')
    a('s_bfe_u32 s5, s2, 0x20003')
    a('s_lshl_b32 s5, s5, 2')
    a('s_and_b32 s6, s3, 3')
    a('s_add_u32 s5, s5, s6')
    a('s_lshl_b32 s7, s4, 4')
    a('s_add_u32 s7, s7, s5')
    a('s_lshl_b32 s7, s7, 11')
    a('s_lshr_b32 s8, s3, 2')
    a('s_lshl_b32 s9, s8, 14')
    a(f'v_add_u32 v{VCUR}, s9, v3')
    a(f'v_add_u32 v{VNEXT}, {RING}, v{VCUR}')
    a('s_waitcnt lgkmcnt(0)')
    srd(a, 24, 20, QF_SZ)
    a(f'buffer_load_dwordx4 {vr(Q0,4)}, v3, s[24:27], s7 offen')
    a(f'buffer_load_dwordx4 {vr(Q1,4)}, v3, s[24:27], s7 offen offset:1024')
    srd(a, 28, 20, OF_SZ, OF_OFF)
    srd(a, 32, 20, KVF_SZ, KVF_OFF)
    for r in range(16): a(f'v_mov_b32 v{O+r}, 0')
    for r in range(4): a(f'v_mov_b32 v{P+4+r}, 0')
    for r in range(4): a(f'v_mov_b32 v{VB[1]+4+r}, 0')
    a('s_mov_b32 s10, 0')
    a(f's_mov_b32 s11, {RING}')
    ST.cyc(a,2)
    a('s_barrier')
    ST.cyc(a,3)
    a(f'ds_read_b128 {vr(KB[0],4)}, v{VCUR}')
    a(f'ds_read_b128 {vr(KB[0]+4,4)}, v{VCUR} offset:1024')
    a(f'ds_read_b128 {vr(KB[1],4)}, v{VCUR} offset:4096')
    a(f'ds_read_b128 {vr(KB[1]+4,4)}, v{VCUR} offset:5120')
    a(f'ds_read_b128 {vr(VB[0],4)}, v{VCUR} offset:2048')
    a(f'ds_read_b128 {vr(VB[0]+4,4)}, v{VCUR} offset:3072')
    a('s_waitcnt vmcnt(0) lgkmcnt(4)')
    a(mfma(S[0], KB[0], Q0, '0'))
    a(mfma(S[0], KB[0]+4, Q1))
    a('s_nop 7')
    a('.p2align 6')
    a.label('A_loop')
    def ex(s, i0):
        for i in range(4): a(f'v_exp_f32 v{s+i0+i}, v{s+i0+i}')
        for i in range(2): a(f'v_cvt_pk_bf16_f32 v{P+i0//2+i}, v{s+i0+2*i}, v{s+i0+2*i+1}')
    for j in range(4):
        par = j & 1
        s, s2 = S[par], S[1-par]
        kn = KB[1-par]
        kw = KB[par]
        vc = VB[par]; vp = VB[1-par]
        ka, ko = (VCUR, (j+2)*4096) if j < 2 else (VNEXT, (j-2)*4096)
        va, vo = (VCUR, (j+1)*4096) if j < 3 else (VNEXT, 0)
        if cfg.get('prio'):
            a(f's_setprio {cfg["prio"][j]}')
        a('s_waitcnt lgkmcnt(1)')
        a(mfma(s2, kn, Q0, '0'))
        if j == 2: a('s_barrier')
        a(f'ds_read_b128 {vr(kw,4)}, v{ka} offset:{ko}')
        ex(s, 0)
        a(mfma(O, vp+4, P+4))
        a(f'ds_read_b128 {vr(kw+4,4)}, v{ka} offset:{ko+1024}')
        ex(s, 4)
        a(mfma(s2, kn+4, Q1))
        a(f'ds_read_b128 {vr(vp,4)}, v{va} offset:{vo+2048}')
        ex(s, 8)
        a(mfma(O, vc, P))
        a(f'ds_read_b128 {vr(vp+4,4)}, v{va} offset:{vo+3072}')
        if j == 3:
            a(f's_add_u32 s11, s11, {RING}')
            a(f's_cmp_eq_u32 s11, {3*RING}')
            a('s_cselect_b32 s11, 0, s11')
            a('s_add_u32 s12, s11, s9')
            a('s_add_u32 s10, s10, 1')
            a('s_cmp_lt_u32 s10, 8')
        ex(s, 12)
        if j == 3:
            a(f'v_mov_b32 v{VCUR}, v{VNEXT}')
            a(f'v_add_u32 v{VNEXT}, s12, v3')
    a('s_cbranch_scc1 A_loop')
    ST.cyc(a,4)
    a('s_waitcnt lgkmcnt(0)')
    a(mfma(O, VB[1]+4, P+4))
    a('s_lshl_b32 s13, s6, 12')
    a('v_add_u32 v6, s13, v3')
    a('s_cmp_eq_u32 s8, 0')
    a('s_cbranch_scc1 A_g0')
    for q in range(4): a(f'ds_write_b128 v6, {vr(O+4*q,4)} offset:{1024*q}')
    a('s_waitcnt lgkmcnt(0)')
    a('s_barrier')
    ST.flush(a); a('s_endpgm')
    a.label('A_g0')
    a('s_barrier')
    ST.cyc(a,5)
    for q in range(4): a(f'ds_read_b128 {vr(S[0]+4*q,4)}, v6 offset:{1024*q}')
    a('s_mov_b32 s14, 0')
    a('s_waitcnt lgkmcnt(0)')
    for r in range(16): a(f'v_add_f32 v{O+r}, v{O+r}, v{S[0]+r}')
    a.label('A_norm')
    a(f'v_mov_b32 v40, v{O+12}')
    a(f'v_mov_b32 v41, v{O+12}')
    a('v_permlane32_swap_b32 v40, v41')
    a('v_rcp_f32 v42, v41')
    a('s_cmp_lg_u32 s14, 0')
    a('s_cbranch_scc1 A_store')
    a('v_mul_f32 v43, 0, v16')
    a('v_mul_f32 v44, 0, v17')
    for r in range(2, 16, 2):
        a(f'v_fmac_f32 v43, 0, v{O+r}')
        a(f'v_fmac_f32 v44, 0, v{O+r+1}')
    a('v_add_f32 v43, v43, v44')
    a('v_add_f32 v43, v43, v41')
    a(f'v_cmp_le_f32 vcc, {hex(f2u(2.0**-60))}, v43')
    a(f's_mov_b32 s15, {hex(f2u(2.0**60))}')
    a('v_cmp_ge_f32 s[22:23], s15, v43')
    a('s_and_b64 vcc, vcc, s[22:23]')
    a('s_cmp_eq_u64 vcc, exec')
    a('s_cbranch_scc0 A_slow')
    a.label('A_store')
    for r in range(16): a(f'v_mul_f32 v{O+r}, v{O+r}, v42')
    for i in range(8): a(f'v_cvt_pk_bf16_f32 v{P+i}, v{O+2*i}, v{O+2*i+1}')
    set_exec(a, 0, 0xffffffff)
    a(f'v_mov_b32 v{P+6}, 0'); a(f'v_mov_b32 v{P+7}, 0')
    set_exec(a, 0xffffffff, 0xffffffff)
    a(f'buffer_store_dwordx4 {vr(P,4)}, v3, s[28:31], s7 offen {cfg.get("pol2","")}')
    a(f'buffer_store_dwordx4 {vr(P+4,4)}, v3, s[28:31], s7 offen offset:1024 {cfg.get("pol2","")}')
    ST.flush(a); a('s_endpgm')
    a.label('A_slow')
    a('s_mov_b32 s14, 1')
    a('v_mov_b32 v45, 0xff800000')
    a('s_mov_b32 s15, 0')
    a.label('A_slow1')
    a(f'buffer_load_dwordx4 {vr(KB[0],4)}, v3, s[32:35], s15 offen')
    a(f'buffer_load_dwordx4 {vr(KB[0]+4,4)}, v3, s[32:35], s15 offen offset:1024')
    a('s_waitcnt vmcnt(0)')
    a(mfma(S[1], KB[0], Q0, '0'))
    a(mfma(S[1], KB[0]+4, Q1))
    for r in range(0, 16, 2): a(f'v_max3_f32 v45, v45, v{S[1]+r}, v{S[1]+r+1}')
    a('s_add_u32 s15, s15, 4096')
    a(f's_cmp_lt_u32 s15, {KVF_SZ}')
    a('s_cbranch_scc1 A_slow1')
    a('v_mov_b32 v46, v45')
    a('v_permlane32_swap_b32 v45, v46')
    a('v_max_f32 v45, v45, v46')
    a('v_sub_f32 v45, 0, v45')
    a('v_and_b32 v46, 0xffff0000, v45')
    a('v_sub_f32 v45, v45, v46')
    a('v_and_b32 v47, 0xffff0000, v45')
    a('v_sub_f32 v45, v45, v47')
    a('v_lshrrev_b32 v46, 16, v46')
    a('v_or_b32 v46, v46, v47')
    a('v_lshrrev_b32 v45, 16, v45')
    set_exec(a, 0, 0xffffffff)
    a(f'v_mov_b32 v{Q1+2}, v46'); a(f'v_mov_b32 v{Q1+3}, v45')
    set_exec(a, 0xffffffff, 0xffffffff)
    for r in range(16): a(f'v_mov_b32 v{O+r}, 0')
    a('s_mov_b32 s15, 0')
    a.label('A_slow2')
    for q in range(4):
        a(f'buffer_load_dwordx4 {vr(KB[0]+4*q,4)}, v3, s[32:35], s15 offen offset:{1024*q}')
    a('s_waitcnt vmcnt(0)')
    a(mfma(S[1], KB[0], Q0, '0'))
    a(mfma(S[1], KB[0]+4, Q1))
    for i0 in (0, 4, 8, 12): ex(S[1], i0)
    a(mfma(O, KB[0]+8, P))
    a(mfma(O, KB[0]+12, P+4))
    a('s_add_u32 s15, s15, 4096')
    a(f's_cmp_lt_u32 s15, {KVF_SZ}')
    a('s_cbranch_scc1 A_slow2')
    a('s_branch A_norm')

def conv(a, cfg):
    a.label('L2_conv')
    a('s_setprio 3')
    a('s_sub_u32 s4, s3, 8')
    a('s_lshr_b32 s5, s4, 1')
    a('s_and_b32 s6, s4, 1')
    a('s_and_b32 s7, s2, 7')
    a('s_lshl_b32 s8, s7, 5')
    a('s_lshr_b32 s9, s2, 3')
    a('s_add_u32 s8, s8, s9')
    a('s_lshl_b32 s10, s4, 13')
    a('s_waitcnt lgkmcnt(0)')
    srd(a, 24, 20, KVF_SZ, KVF_OFF)
    def kv_dma(c):
        slot = (c % 3) * RING
        for half in range(2):
            a(f's_add_u32 m0, s10, {slot + 4096*half}')
            a(f's_add_u32 s11, s10, {c*RING + 4096*half}')
            for q in range(4):
                a(f'buffer_load_dwordx4 v3, s[24:27], s11 offen offset:{1024*q} lds')
    for c in range(3): kv_dma(c)
    a('s_cmp_eq_u32 s7, 7')
    a('s_cbranch_scc1 C_noconv')
    srd(a, 28, 20, UT_SZ, UT_OFF)
    srd(a, 32, 20, G_SZ, G_OFF)
    srd(a, 36, 20, YT_SZ, YT_OFF)
    a(f's_mul_i32 s14, s5, {CCH}')
    a(f's_add_u32 s14, s14, {CONV}')
    a('s_lshl_b32 s12, s8, 1')
    a('s_add_u32 s12, s12, s5')
    a('s_lshl_b32 s13, s12, 12')
    a('s_lshl_b32 s23, s6, 7')
    for j in range(3):
        a(f'v_add_u32 v8, s23, v2')
        if j: a(f'v_add_u32 v8, {64*j}, v8')
        a('v_mul_u32_u24 v9, 52429, v8')
        a('v_lshrrev_b32 v9, 18, v9')
        a('v_mul_u32_u24 v10, 5, v9')
        a('v_sub_u32 v10, v8, v10')
        a('v_min_u32 v10, 3, v10')
        a('v_lshlrev_b32 v10, 4, v10')
        a(f'v_lshl_add_u32 v{11+j}, v9, 6, v10')
    a('s_lshl_b32 s23, s6, 11')
    a('s_add_u32 s23, s23, s14')
    for j in range(3):
        a(f's_add_u32 m0, s23, {UD+1024*j}')
        a(f'buffer_load_dwordx4 v{11+j}, s[28:31], s13 offen lds')
    a(f's_mul_i32 s15, s12, {G_CH}')
    a('s_lshl_b32 s22, s6, 2')
    a('s_add_u32 s15, s15, s22')
    a(f's_mul_i32 s22, s6, {2*RCOPY}')
    a('s_add_u32 s22, s22, s14')
    for odd in range(2):
        a(f's_add_u32 m0, s22, {odd*RCOPY}')
        a(f's_add_u32 s11, s15, {odd*G_ODD}')
        for q in range(4):
            a(f'buffer_load_dwordx4 v3, s[32:35], s11 offen offset:{1024*q} lds')
    for r in range(4): a(f'v_mov_b32 v{16+r}, 0')
    a('s_lshl_b32 s23, s6, 9')
    a('s_add_u32 s23, s23, s14')
    a('v_add_u32 v5, s23, v3')
    a(f'ds_write_b128 v5, v[16:19] offset:{UZ}')
    a(f'ds_write_b128 v5, v[16:19] offset:{UZ+1024}')
    a('v_and_b32 v5, 3, v2')
    a('v_lshlrev_b32 v5, 4, v5')
    a('v_bfe_u32 v6, v2, 2, 1')
    a(f'v_mul_u32_u24 v6, {RCOPY}, v6')
    a('v_add3_u32 v5, v5, v6, s22')
    a('ds_write_b128 v5, v[16:19] offset:4096')
    a('v_and_b32 v20, 31, v2')
    a('v_lshrrev_b32 v21, 5, v2')
    a('v_xor_b32 v6, 3, v20')
    a('v_and_b32 v6, 3, v6')
    a('v_lshlrev_b32 v7, 3, v21')
    a('v_sub_u32 v7, v7, v20')
    a('v_sub_u32 v7, v7, v6')
    a('s_lshl_b32 s23, s6, 4')
    a('s_add_u32 s23, s23, 1023')
    a('v_add_u32 v7, s23, v7')
    a(f'v_mul_u32_u24 v6, {RCOPY}, v6')
    a('v_lshl_add_u32 v6, v7, 1, v6')
    a('v_add_u32 v6, s14, v6')
    a('v_mul_u32_u24 v7, 80, v20')
    a('v_lshl_add_u32 v7, v21, 4, v7')
    a('s_lshl_b32 s23, s6, 5')
    a('s_add_u32 s23, s23, s14')
    a(f's_add_u32 s23, s23, {UD}')
    a('v_add_u32 v7, s23, v7')
    a('v_mul_u32_u24 v22, 144, v20')
    a('v_lshl_add_u32 v22, v21, 4, v22')
    a('s_mul_i32 s23, s4, 9216')
    a(f's_add_u32 s23, s23, {SCR}')
    a('v_add_u32 v22, s23, v22')
    a('v_lshrrev_b32 v23, 2, v2')
    a('v_mul_u32_u24 v23, 144, v23')
    a('v_and_b32 v24, 3, v2')
    a('v_lshl_add_u32 v23, v24, 5, v23')
    a('s_mul_i32 s23, s5, 18432')
    a('s_mul_i32 s40, s6, 4608')
    a('s_add_u32 s23, s23, s40')
    a(f's_add_u32 s23, s23, {SCR}')
    a('v_add_u32 v23, s23, v23')
    ACC0, ACC1 = 32, 48
    for r in range(32): a(f'v_mov_b32 v{ACC0+r}, 0')
    ST.cyc(a,2)
    a('s_waitcnt vmcnt(27)')
    a('s_barrier')
    ST.cyc(a,3)
    a('s_waitcnt vmcnt(19)')
    a('s_barrier')
    ST.cyc(a,4)
    a('s_waitcnt vmcnt(0) lgkmcnt(0)')
    ST.cyc(a,6)
    a('s_barrier')
    ST.cyc(a,7)
    A1, A2, B1, B2 = 64, 68, 72, 76
    d = 0
    for iv, n in enumerate(CONV_SPLIT):
        c = iv + 3
        if c < 8: kv_dma(c)
        a(f'v_subrev_u32 v6, {64*n}, v6')
        a(f'v_subrev_u32 v7, {80*n}, v7')
        for i in range(n):
            oa = 64*(n-i); ob = 80*(n-i)
            a(f'ds_read_b64 {vr(A1,2)}, v6 offset:{oa+2048}')
            a(f'ds_read_b64 {vr(A1+2,2)}, v6 offset:{oa+2048+8}')
            a(f'ds_read_b128 {vr(B2,4)}, v7 offset:{ob+2560}')
            a(f'ds_read_b128 {vr(B1,4)}, v7 offset:{ob}')
            a('s_waitcnt lgkmcnt(1)')
            a(mfma(ACC1, A1, B2))
            a(f'ds_read_b64 {vr(A2,2)}, v6 offset:{oa}')
            a(f'ds_read_b64 {vr(A2+2,2)}, v6 offset:{oa+8}')
            a('s_waitcnt lgkmcnt(2)')
            a(mfma(ACC0, A1, B1))
            a('s_waitcnt lgkmcnt(0)')
            a(mfma(ACC1, A2, B1))
            d += 1
        if iv == len(CONV_SPLIT) - 1:
            for tile in range(2):
                for g in range(4):
                    a(f'ds_write_b128 v22, {vr(ACC0+16*tile+4*g,4)} offset:{4608*tile+32*g}')
            a('s_waitcnt lgkmcnt(0)')
        a('s_waitcnt vmcnt(0)')
        if iv in (0,2,5): ST.cyc(a, {0:8,2:10,5:12}[iv])
        a('s_barrier')
        if iv in (0,2,5): ST.cyc(a, {0:9,2:11,5:13}[iv])
    assert d == 32
    for j in range(2):
        for hs in range(2):
            for q in range(2):
                a(f'ds_read_b128 {vr(32+16*j+8*hs+4*q,4)}, v23 offset:{2304*j+9216*hs+16*q}')
    a('s_lshl_b32 s23, s6, 11')
    a('s_add_u32 s13, s13, s23')
    for j in range(2):
        a(f's_waitcnt lgkmcnt({4*(1-j)})')
        for r in range(8): a(f'v_add_f32 v{32+16*j+r}, v{32+16*j+r}, v{40+16*j+r}')
        for r in range(4): a(f'v_cvt_pk_bf16_f32 v{64+4*j+r}, v{32+16*j+2*r}, v{33+16*j+2*r}')
        a(f'buffer_store_dwordx4 {vr(64+4*j,4)}, v3, s[36:39], s13 offen offset:{1024*j} {cfg.get("pol2","")}')
    ST.flush(a); a('s_endpgm')
    a.label('C_noconv')
    a('s_waitcnt vmcnt(16)')
    a('s_barrier')
    a('s_waitcnt vmcnt(8)')
    a('s_barrier')
    a('s_waitcnt vmcnt(0)')
    a('s_barrier')
    for c in range(3, 9):
        if c < 8: kv_dma(c)
        a('s_waitcnt vmcnt(0)')
        a('s_barrier')
```

```python
from common import *
L3_LDS = 32768 + 64*144
def gen_l3(cfg={}):
    ST = Stamper(cfg.get('stamp'), 2, 20)
    a = Asm()
    ST.init(a); ST.real(a,0); ST.cyc(a,1)
    a('s_cmp_ge_u32 s2, 256')
    a('s_cbranch_scc1 L3_end')
    a('s_load_dwordx2 s[18:19], s[0:1], 96')
    a('s_load_dwordx2 s[20:21], s[0:1], 112')
    a('v_lshrrev_b32 v1, 6, v0')
    a('v_and_b32 v2, 63, v0')
    a('v_readfirstlane_b32 s3, v1')
    a('v_lshlrev_b32 v3, 4, v2')
    a('s_and_b32 s4, s2, 7')
    a('s_lshr_b32 s5, s2, 5')
    a('s_lshl_b32 s5, s5, 3')
    a('s_or_b32 s4, s4, s5')
    a('s_bfe_u32 s5, s2, 0x20003')
    a('s_lshl_b32 s5, s5, 2')
    a('s_add_u32 s5, s5, s3')
    a('s_min_u32 s12, s5, 13')
    a('s_lshl_b32 s6, s4, 15')
    a('s_lshl_b32 s13, s3, 13')
    a('s_add_u32 s6, s6, s13')
    a('s_lshl_b32 s7, s12, 15')
    a('s_and_b32 s14, s2, 7')
    a('s_lshr_b32 s15, s2, 3')
    a('v_lshrrev_b32 v4, 3, v0')
    a('v_and_b32 v5, 7, v0')
    a('v_lshlrev_b32 v6, 12, v4')
    a('v_lshl_add_u32 v6, v5, 4, v6')
    a('s_lshl_b32 s16, s14, 18')
    a('s_lshl_b32 s17, s15, 7')
    a('s_add_u32 s16, s16, s17')
    a('s_waitcnt lgkmcnt(0)')
    srd(a, 24, 20, OF_SZ, OF_OFF)
    srd(a, 28, 20, WOF_SZ, WOF_OFF)
    srd(a, 32, 18, 2048*1792)
    srd(a, 36, 20, YT_SZ, YT_OFF)
    for half in range(2):
        a(f's_add_u32 m0, s13, {4096*half}')
        a(f's_add_u32 s8, s6, {4096*half}')
        for q in range(4): a(f'buffer_load_dwordx4 v3, s[24:27], s8 offen offset:{1024*q} lds')
    a('buffer_load_dwordx4 v[8:11], v6, s[36:39], s16 offen')
    a('s_add_u32 s16, s16, 0x20000')
    a('buffer_load_dwordx4 v[12:15], v6, s[36:39], s16 offen')
    for k in range(32):
        if k % 4 == 0: a(f's_add_u32 s9, s7, {1024*k}')
        a(f'buffer_load_dwordx4 {vr(32+4*k,4)}, v3, s[28:31], s9 offen offset:{1024*(k%4)}')
    a('v_mul_u32_u24 v7, 144, v4')
    a('v_lshl_add_u32 v7, v5, 4, v7')
    a('v_lshrrev_b32 v4, 4, v2')
    a('v_bfe_u32 v5, v2, 2, 2')
    a('v_lshl_add_u32 v5, v4, 3, v5')
    a('v_mul_u32_u24 v6, 144, v5')
    a('v_and_b32 v5, 3, v2')
    a('v_lshl_add_u32 v6, v5, 3, v6')
    a('s_lshl_b32 s17, s3, 5')
    a('v_add_u32 v6, s17, v6')
    a('v_and_b32 v5, 15, v2')
    a('v_mul_u32_u24 v5, 1792, v5')
    a('v_lshl_add_u32 v5, v4, 4, v5')
    a('s_lshl_b32 s17, s15, 2')
    a('s_add_u32 s17, s17, s3')
    a('s_mul_i32 s17, s17, 28672')
    a('s_lshl_b32 s22, s14, 7')
    a('s_add_u32 s17, s17, s22')
    ST.cyc(a,2)
    a('s_waitcnt vmcnt(32)')
    a('ds_write_b128 v7, v[8:11] offset:32768')
    a(f'ds_write_b128 v7, v[12:15] offset:{32768+32*144}')
    a('s_waitcnt lgkmcnt(0)')
    a('s_barrier')
    ST.cyc(a,3)
    a('s_cmp_eq_u32 s14, 7')
    a('s_cbranch_scc1 L3_noy')
    for hf in range(2):
        for u in range(2):
            a(f'ds_read_b64_tr_b16 {vr(8+4*hf+2*u,2)}, v6 offset:{32768+(32*hf+4*u)*144}')
    a('s_waitcnt lgkmcnt(0)')
    a('buffer_store_dwordx4 v[8:11], v5, s[32:35], s17 offen')
    a('buffer_store_dwordx4 v[12:15], v5, s[32:35], s17 offen offset:64')
    a('s_nop 0')
    a.label('L3_noy')
    a('s_cmp_ge_u32 s5, 14')
    a('s_cbranch_scc1 L3_end')
    BF = [160, 164, 168, 172]
    for k in range(3): a(f'ds_read_b128 {vr(BF[k],4)}, v3 offset:{1024*k}')
    for k in range(32):
        if k+3 < 32: a(f'ds_read_b128 {vr(BF[(k+3)%4],4)}, v3 offset:{1024*(k+3)}')
        a(f's_waitcnt vmcnt({31-k}) lgkmcnt({min(3,31-k)})')
        a(mfma(16, 32+4*k, BF[k%4], '0' if k == 0 else None))
    ST.cyc(a,4)
    a('v_and_b32 v4, 31, v2')
    a('v_lshrrev_b32 v5, 5, v2')
    a('v_mul_u32_u24 v4, 1792, v4')
    a('v_lshl_add_u32 v4, v5, 4, v4')
    a('s_mul_i32 s10, s4, 57344')
    a('s_lshl_b32 s11, s5, 6')
    a('s_add_u32 s10, s10, s11')
    a('s_add_u32 s10, s10, 896')
    for i in range(8): a(f'v_cvt_pk_bf16_f32 v{32+i}, v{16+2*i}, v{17+2*i}')
    a('v_permlane32_swap_b32 v32, v34')
    a('v_permlane32_swap_b32 v33, v35')
    a('v_permlane32_swap_b32 v36, v38')
    a('v_permlane32_swap_b32 v37, v39')
    a('buffer_store_dwordx4 v[32:35], v4, s[32:35], s10 offen')
    a('buffer_store_dwordx4 v[36:39], v4, s[32:35], s10 offen offset:32')
    ST.flush(a)
    a.label('L3_end')
    a('s_endpgm')
    return a
```

```python
import sys
from common import *
import k1, k2, k3
HEADER = open('cdna_kernels/'+NAME+'.s.ref').read().split('; Override')[0]
def kernel(name, a, vgpr, sgpr=100):
    n = a.pad()
    print(f'{name}: {len(a.lines)} lines, {n} wait states padded', file=sys.stderr)
    code = f'.globl {name}\n.p2align 8\n.type {name},@function\n{name}:\n' + a.text()
    acc = (vgpr + 3)//4*4
    kd = f'''.p2align 6
.amdhsa_kernel {name}
  .amdhsa_next_free_vgpr {vgpr}
  .amdhsa_next_free_sgpr {sgpr}
  .amdhsa_accum_offset {acc}
  .amdhsa_group_segment_fixed_size 0
  .amdhsa_kernarg_size 120
  .amdhsa_user_sgpr_count 2
  .amdhsa_user_sgpr_kernarg_segment_ptr 1
  .amdhsa_system_sgpr_workgroup_id_x 1
.end_amdhsa_kernel
'''
    return code, kd
def build(cfg={}):
    ks = [('l1_kernel', k1.gen_l1(cfg), 128, (496, 512, k1.L1_LDS)),
          ('l2_kernel', k2.gen_l2(cfg), 104, (256, 768, k2.L2_LDS)),
          ('l3_kernel', k3.gen_l3(cfg), 176, (256, 256, k3.L3_LDS))]
    s = HEADER
    for name, a, v, (g, b, l) in ks:
        s += f'; @launch kernel={name} grid=({g},1,1) block=({b},1,1) lds={l}\n'
    s += '.amdgcn_target "amdgcn-amd-amdhsa--gfx950"\n.text\n'
    kds = ''
    for name, a, v, _ in ks:
        c, kd = kernel(name, a, v)
        s += c; kds += kd
    s += '.section .rodata,"a"\n' + kds
    return s
if __name__ == '__main__':
    out = sys.argv[1] if len(sys.argv) > 1 else 'cdna_kernels/'+NAME+'.s'
    cfg = eval(sys.argv[2]) if len(sys.argv) > 2 else {}
    open(out, 'w').write(build(cfg))
```
